```python
import torch

def _softmax(x, axis=-1):
    return torch.softmax(x, dim=axis)
def _gelu(x):
    return torch.nn.functional.gelu(x, approximate="tanh")
def _silu(x):
    return torch.nn.functional.silu(x)
def _sigmoid(x):
    return torch.sigmoid(x)
def _layernorm(x, axis=-1, eps=1e-5):
    m = x.mean(dim=axis, keepdim=True)
    v = x.var(dim=axis, keepdim=True, unbiased=False)
    return (x - m) / torch.sqrt(v + eps)
def _scatter_add(tgt, idx, src, axis=0):
    return tgt.clone().index_add_(axis, idx, src)
def _segment_sum(src, seg, n):
    out = torch.zeros((n,) + src.shape[1:], dtype=src.dtype)
    return out.index_add_(0, seg, src)
def _pad(x, pw):
    flat = tuple(v for pair in reversed(pw) for v in pair)
    return torch.nn.functional.pad(x, flat)

kernel_name = 'sequential_preLN__linear_kernel_hedgehog__dense_activation_relu__prompt'

def setup_inputs():

    _w = (lambda a: (lambda t: t.to(torch.bfloat16) if t.is_floating_point() else t)(torch.as_tensor(a)))
    def _A_setup():
        B, S, D, H = 1, 2048, 576, 32
        Dh = D // H
        return {
            "x": _w((lambda *s: torch.randn(*s, dtype=torch.bfloat16) * 0.05)(B, S, D)),
            "wqkv": _w((lambda *s: torch.randn(*s, dtype=torch.bfloat16) * 0.2)(D, 3 * D)),
            "w_phi": _w((lambda *s: torch.randn(*s, dtype=torch.bfloat16) * 0.2)(H, Dh, Dh) * (Dh ** -0.5)),
            "wo": _w((lambda *s: torch.randn(*s, dtype=torch.bfloat16) * 0.05)(D, D)),
        }
    _A_in = _A_setup()

    def _B_setup():
        B, S, D, Dff = 1, 2048, 576, 4608
        return {
            "x": _w((lambda *s: torch.randn(*s, dtype=torch.bfloat16) * 0.05)(B, S, D)),
            "w1": _w((lambda *s: torch.randn(*s, dtype=torch.bfloat16) * 0.05)(D, Dff)),
            "w2": _w((lambda *s: torch.randn(*s, dtype=torch.bfloat16) * 0.05)(Dff, D)),
        }
    _B_in = _B_setup()

    return {
        "A_x": _A_in["x"],
        "A_wqkv": _A_in["wqkv"],
        "A_w_phi": _A_in["w_phi"],
        "A_wo": _A_in["wo"],
        "B_x": _B_in["x"],
        "B_w1": _B_in["w1"],
        "B_w2": _B_in["w2"],
    }

def reference(A_x, A_wqkv, A_w_phi, A_wo, B_x, B_w1, B_w2):
    def _A_ref(x, wqkv, w_phi, wo):
        B, S, D = x.shape
        H = 32; Dh = D // H
        qkv = (lambda x, *d: x.permute(*d))((x @ wqkv).reshape(B, S, 3, H, Dh), 2, 0, 3, 1, 4)
        q, k, v = qkv[0], qkv[1], qkv[2]
        pq = torch.einsum("bhsd,hdf->bhsf", q, w_phi)
        pk = torch.einsum("bhsd,hdf->bhsf", k, w_phi)
        phi_q = torch.concatenate([_softmax(pq, axis=-1), _softmax(-pq, axis=-1)], axis=-1)
        phi_k = torch.concatenate([_softmax(pk, axis=-1), _softmax(-pk, axis=-1)], axis=-1)
        kv = torch.einsum("bhsf,bhsd->bhfd", phi_k, v)
        z  = torch.einsum("bhsf->bhf", phi_k)
        num = torch.einsum("bhqf,bhfd->bhqd", phi_q, kv)
        den = torch.einsum("bhqf,bhf->bhq", phi_q, z)[..., None] + 1e-6
        o = num / den
        return (lambda x, *d: x.permute(*d))(o, 0, 2, 1, 3).reshape(B, S, D) @ wo

    def _B_ref(x, w1, w2):
        h = torch.einsum("bsd,df->bsf", x, w1)
        zero = torch.zeros_like(h)
        h = torch.maximum(h, zero)
        return torch.einsum("bsf,fd->bsd", h, w2)

    x = A_x
    h = x + _A_ref(_layernorm(x, axis=-1), A_wqkv, A_w_phi, A_wo)
    h2 = h + _B_ref(_layernorm(h, axis=-1), B_w1, B_w2)
    return h2
```

```python
import re

def _expand(tok):
    tok = tok.strip()
    neg = tok.lstrip('-')
    m = re.fullmatch(r'abs\((.*)\)', neg)
    if m: neg = m.group(1)
    m = re.fullmatch(r'\|(.*)\|', neg)
    if m: neg = m.group(1)
    m = re.fullmatch(r'([vas])(\d+)', neg)
    if m: return [(m.group(1), int(m.group(2)))]
    m = re.fullmatch(r'([vas])\[(\d+):(\d+)\]', neg)
    if m: return [(m.group(1), i) for i in range(int(m.group(2)), int(m.group(3)) + 1)]
    if neg == 'vcc': return [('s', 'vcc_lo'), ('s', 'vcc_hi')]
    if neg in ('vcc_lo', 'vcc_hi'): return [('s', neg)]
    if neg == 'exec': return [('s', 'exec_lo'), ('s', 'exec_hi')]
    if neg == 'm0': return [('s', 'm0')]
    return []

TRANS = ('v_exp_f32', 'v_log_f32', 'v_rcp_f32', 'v_rsq_f32', 'v_sqrt_f32', 'v_sin_f32', 'v_cos_f32', 'v_rcp_iflag_f32')

class Ins:
    __slots__ = ('text', 'op', 'kind', 'w', 'r', 'A', 'B', 'C', 'passes', 'ws', 'label', 'target', 'data', 'flags')
    def __init__(self, text):
        self.text = text; self.w = set(); self.r = set(); self.A = self.B = self.C = None
        self.passes = 0; self.ws = 1; self.label = None; self.target = None; self.data = set(); self.flags = set()
        t = text.split(';')[0].strip()
        if not t or t.startswith('.'):
            self.kind = 'none'; self.op = ''; self.ws = 0; return
        if t.endswith(':'):
            self.kind = 'label'; self.op = ''; self.label = t[:-1]; self.ws = 0; return
        parts = t.split(None, 1)
        op = parts[0]; self.op = op
        rest = parts[1] if len(parts) > 1 else ''
        ops = [o.strip() for o in re.split(r',\s*(?![^\[]*\])(?![^\(]*\))', rest)] if rest else []
        mods = ''
        if ops:
            sp = ops[-1].split(None, 1)
            if len(sp) > 1 and not ops[-1].startswith('hwreg'):
                ops[-1] = sp[0]; mods = sp[1]
            elif len(sp) == 1 and not _expand(sp[0]) and op.startswith(('buffer_', 'global_', 'ds_')) and sp[0] in ('lds', 'offen', 'off'):
                pass
        R = lambda toks: set(x for tk in toks for x in _expand(tk))
        opb = re.sub(r'_(e32|e64|dpp|sdwa)$', '', op)
        if op == 's_nop':
            self.kind = 'salu'; self.ws = int(ops[0], 0) + 1; return
        if op.startswith('v_mfma'):
            self.kind = 'mfma'
            self.w = R(ops[:1]); self.A = R(ops[1:2]); self.B = R(ops[2:3]); self.C = R(ops[3:4])
            self.r = self.A | self.B | self.C
            if '32x32x16' in op or '32x32x8' in op: self.passes = 8
            elif '16x16x32' in op or '16x16x16' in op: self.passes = 4
            else: raise ValueError(op)
            return
        if op.startswith('v_'):
            self.kind = 'valu'
            if opb.startswith('v_cmp'):
                self.w = R(ops[:1]); self.r = R(ops[1:])
            elif opb in ('v_permlane32_swap_b32', 'v_permlane16_swap_b32'):
                self.w = R(ops[:2]); self.r = R(ops[:2]); self.flags.add('permlane')
            elif opb in ('v_add_co_u32', 'v_sub_co_u32', 'v_addc_co_u32'):
                self.w = R(ops[:2]); self.r = R(ops[2:])
            elif opb in ('v_fmac_f32', 'v_dot2c_f32_bf16', 'v_pk_fmac_f16'):
                self.w = R(ops[:1]); self.r = R(ops)
            else:
                self.w = R(ops[:1]); self.r = R(ops[1:])
            if opb == 'v_cndmask_b32' and len(ops) == 3: self.r |= R(['vcc'])
            if opb in ('v_readfirstlane_b32', 'v_readlane_b32'): self.flags.add('readlane')
            if opb in TRANS: self.flags.add('trans')
            if opb.startswith('v_dot'): self.flags.add('dot')
            if op.endswith('_dpp') or 'row_' in mods or 'quad_perm' in mods: self.flags.add('dpp')
            if ('op_sel' in mods and not opb.startswith('v_pk_')) or 'dst_sel' in mods: self.flags.add('opsel')
            return
        if op.startswith('ds_'):
            self.kind = 'ds'
            if op.startswith(('ds_read', 'ds_bpermute', 'ds_permute', 'ds_swizzle')):
                self.w = R(ops[:1]); self.r = R(ops[1:])
                if 'd16' in op: self.r |= self.w
            else:
                self.r = R(ops)
            return
        if op.startswith(('buffer_', 'global_', 'flat_')):
            self.kind = 'vmem'
            allmods = mods + ' ' + (ops[-1] if ops else '')
            is_lds = bool(re.search(r'\blds\b', mods)) or '_lds_' in op
            if op in ('buffer_wbl2', 'buffer_inv'): return
            if is_lds:
                self.r = R(ops) | {('s', 'm0')}; self.flags.add('ldsdma')
            elif '_load' in op:
                self.w = R(ops[:1]); self.r = R(ops[1:])
                if 'd16' in op: self.r |= self.w
            elif '_store' in op:
                self.r = R(ops)
                d = R(ops[:1]) if op.startswith('buffer_') else R(ops[1:2])
                if 'x4' in op or 'x3' in op: self.data = d
            elif '_atomic' in op:
                self.r = R(ops)
                if re.search(r'\bsc0\b', mods): self.w = R(ops[:1])
            else: raise ValueError(text)
            return
        if op.startswith('s_'):
            self.kind = 'salu'
            if op.startswith(('s_cbranch', 's_branch')):
                self.kind = 'branch'; self.target = ops[0]; return
            if op in ('s_endpgm',): self.kind = 'end'; return
            if op.startswith(('s_cmp', 's_waitcnt', 's_barrier', 's_sleep', 's_setprio', 's_bitcmp')):
                self.r = R(ops) if op.startswith(('s_cmp', 's_bitcmp')) else set(); return
            if op.startswith(('s_load', 's_memtime', 's_memrealtime', 's_buffer_load')):
                self.kind = 'smem'; self.w = R(ops[:1]); self.r = R(ops[1:]); return
            if 'saveexec' in op:
                self.w = R(ops[:1]) | R(['exec']); self.r = R(ops[1:]); return
            self.w = R(ops[:1]); self.r = R(ops[1:])
            return
        raise ValueError('unknown instr: ' + text)

def _vg(s): return {x for x in s if x[0] in 'va'}
def _sg(s): return {x for x in s if x[0] == 's'}

def required(p, c):
    n = 0
    if p.kind == 'valu':
        vw = _vg(p.w); sw = _sg(p.w)
        if vw:
            if c.kind == 'mfma' and vw & c.r: n = max(n, 2)
            if c.kind == 'valu':
                if 'readlane' in c.flags and vw & c.r: n = max(n, 1)
                if 'permlane' in c.flags and vw & c.r: n = max(n, 2)
                if 'dpp' in c.flags and vw & c.r: n = max(n, 2)
                if 'trans' in p.flags and 'trans' not in c.flags and vw & c.r: n = max(n, 1)
                if 'opsel' in p.flags and vw & (c.r | c.w): n = max(n, 1)
            if 'trans' in p.flags and c.kind in ('vmem', 'ds') and vw & c.r: n = max(n, 1)
            if 'dot' in p.flags:
                if c.kind == 'valu' and c.op == p.op and (vw & c.w) and not (vw & (c.r - c.w)): pass
                elif vw & (c.r | c.w): n = max(n, 3)
        if sw:
            if c.kind == 'vmem' and sw & c.r: n = max(n, 5)
            if c.kind == 'valu' and sw & c.r: n = max(n, 4 if 'readlane' in c.flags else 2)
            if c.kind in ('salu', 'branch', 'smem') and sw & c.r: n = max(n, 1)
    elif p.kind == 'mfma':
        big = {4: 8, 8: 12}[p.passes]; ovl = {4: 6, 8: 10}[p.passes]; war = {4: 3, 8: 7}[p.passes]
        if c.kind == 'mfma':
            if p.w & (c.A | c.B): n = max(n, big)
            if p.w & c.C:
                if not (p.w == c.C and p.op == c.op): n = max(n, ovl)
            elif p.w & c.w: n = max(n, ovl)
        elif c.kind in ('valu', 'vmem', 'ds'):
            if p.w & (c.r | c.w): n = max(n, big)
            if c.kind == 'valu' and p.C & c.w: n = max(n, war)
    elif p.kind == 'salu':
        if ('s', 'm0') in p.w and 'ldsdma' in c.flags: n = max(n, 1)
    elif p.kind == 'vmem':
        if p.data & c.w: n = max(n, 2 if c.kind == 'valu' else 1)
    return n

MAXD = 14

def hazard_pass(lines):
    ins = [Ins(l) for l in lines]
    labels = {i.label: k for k, i in enumerate(ins) if i.kind == 'label'}
    out = []
    nins = 0
    def recent():
        res = []; d = 0
        for i in reversed(out):
            if i.ws == 0: continue
            res.append((i, d)); d += i.ws
            if d > MAXD: break
        return res
    def nop(n):
        nonlocal nins
        while n > 0:
            k = min(n, 16); out.append(Ins(f's_nop {k-1}')); n -= k; nins += 1
    def shortfall_path(start, extra, depth=0):
        need = 0; d = extra; k = start
        rec = recent()
        while k < len(ins) and d <= MAXD:
            c = ins[k]
            if c.ws:
                for p, pd in rec:
                    need = max(need, required(p, c) - (pd + d))
                if c.kind == 'end': break
                if c.kind == 'branch':
                    if depth < 3: need = max(need, shortfall_path(labels[c.target], d + 1, depth + 1))
                    if c.op == 's_branch': break
                d += c.ws
            k += 1
        return need
    for k, c in enumerate(ins):
        if c.ws:
            need = 0
            for p, pd in recent(): need = max(need, required(p, c) - pd)
            if need > 0: nop(need)
            if c.kind == 'branch':
                n2 = shortfall_path(labels[c.target], 1)
                if n2 > 0: nop(n2)
        out.append(c)
    return [i.text for i in out], nins

class Kern:
    def __init__(self, name, grid, block, lds, nvgpr=256, nagpr=0, nsgpr=96):
        self.name = name; self.grid = grid; self.block = block; self.lds = lds
        self.nvgpr = nvgpr; self.nagpr = nagpr; self.nsgpr = nsgpr
        self.L = []; self.vm = []
        self.lg = []
        self.uid = 0
    def __call__(self, s):
        for l in s.split('\n'):
            l = l.strip()
            if l: self.L.append(l)
    def vmem(self, s, tag):
        self(s); self.vm.append(tag)
    def wait_vm(self, tag, extra=''):
        idx = max(i for i, t in enumerate(self.vm) if t == tag)
        n = len(self.vm) - 1 - idx
        assert n <= 63, n
        self(f's_waitcnt vmcnt({n}) {extra}')
    def lds_op(self, s, tag):
        self(s); self.lg.append(tag)
    def wait_lg(self, tag):
        idx = max(i for i, t in enumerate(self.lg) if t == tag)
        n = len(self.lg) - 1 - idx
        assert n <= 15, n
        self(f's_waitcnt lgkmcnt({n})')
    def label(self, base):
        self.uid += 1; return f'L_{self.name}_{base}_{self.uid}'
    def launch_line(self):
        return f'; @launch kernel={self.name} grid=({self.grid},1,1) block=({self.block},1,1) lds={self.lds}'
    def text(self):
        body, n = hazard_pass(self.L)
        acc = (self.nvgpr + 3) // 4 * 4
        nfv = acc + self.nagpr if self.nagpr else self.nvgpr
        t = f'.text\n.globl {self.name}\n.p2align 8\n.type {self.name},@function\n{self.name}:\n'
        t += '\n'.join(('' if l.endswith(':') else '    ') + l for l in body) + '\n'
        t += f'.section .rodata,"a"\n.p2align 6\n.amdhsa_kernel {self.name}\n'
        t += f'  .amdhsa_next_free_vgpr {nfv}\n  .amdhsa_next_free_sgpr {self.nsgpr}\n  .amdhsa_accum_offset {acc}\n'
        t += '  .amdhsa_group_segment_fixed_size 0\n  .amdhsa_kernarg_size 80\n  .amdhsa_user_sgpr_count 2\n'
        t += '  .amdhsa_user_sgpr_kernarg_segment_ptr 1\n  .amdhsa_system_sgpr_workgroup_id_x 1\n'
        t += '  .amdhsa_float_denorm_mode_32 3\n.end_amdhsa_kernel\n'
        self.nops_inserted = n
        return t

def srd(k, base, lo, hi, nbytes):
    k(f's_mov_b32 s{base}, s{lo}\ns_and_b32 s{base+1}, s{hi}, 0xffff\ns_mov_b32 s{base+2}, {nbytes}\ns_mov_b32 s{base+3}, 0x20000')

def magic(d): return -(-(1 << 32) // d)
```

```python
import sys
from asmlib import *

WS_O   = 0x000000
WS_HF  = 0x240000
WS_ST  = 0x480000
WS_KV  = 0x4C0000
WS_P   = 0x800000
WS_END = WS_P + 16 * 2359296
PSTORE = ''
WS_DBG = 0x700000
STAMPS = False
OPT = set()
def stamp(k):
    if not STAMPS: return
    n = getattr(k, 'nstamp', 0); k.nstamp = n + 1
    assert n < 24
    k(f's_memtime s[{44+2*n}:{45+2*n}]')
def dump_stamps(k, srd_base, wave_sgpr, koff):
    if not STAMPS: return
    stamp(k)
    k('s_waitcnt lgkmcnt(0)')
    k(f's_lshl_b32 s40, s2, 3\ns_add_u32 s40, s40, s{wave_sgpr}\ns_lshl_b32 s40, s40, 7\ns_add_u32 s40, s40, {WS_DBG + koff*0x40000}')
    k('s_mov_b64 exec, 1')
    k('v_mov_b32 v1, 0')
    for n in range(k.nstamp):
        k(f's_sub_u32 s41, s{44+2*n}, s44')
        k('v_mov_b32 v2, s41')
        k(f'buffer_store_dword v2, v1, s[{srd_base}:{srd_base+3}], s40 offen offset:{4*n}')
    k('s_memrealtime s[42:43]\ns_waitcnt lgkmcnt(0)\nv_mov_b32 v2, s42')
    k(f'buffer_store_dword v2, v1, s[{srd_base}:{srd_base+3}], s40 offen offset:124')
    k('v_mov_b32 v2, s92')
    k(f'buffer_store_dword v2, v1, s[{srd_base}:{srd_base+3}], s40 offen offset:120')
    k(f'v_mov_b32 v2, {k.nstamp}')
    k(f'buffer_store_dword v2, v1, s[{srd_base}:{srd_base+3}], s40 offen offset:116')

def ids(k, nwg):
    k(f's_cmp_ge_u32 s2, {nwg}')
    k(f's_cbranch_scc1 L_{k.name}_done')

def gen_k3():
    k = Kern('ffn_kernel', 256, 256, 4 * 36864, nvgpr=244, nagpr=32)
    SLOT = 36864
    D, NB = 6, 8
    ids(k, 256)
    if STAMPS: k('s_memrealtime s[92:93]')
    stamp(k)
    k('s_load_dwordx4 s[4:7], s[0:1], 40')
    k('s_load_dwordx2 s[24:25], s[0:1], 72')
    k('v_lshrrev_b32 v2, 6, v0')
    k('v_and_b32 v1, 63, v0')
    k('v_readfirstlane_b32 s20, v2')
    k('s_and_b32 s21, s2, 15')
    k('s_lshr_b32 s22, s2, 4')
    k('s_cmp_ge_u32 s22, 9\ns_cselect_b32 s23, 9, 0\ns_sub_u32 s23, s22, s23')
    k(f's_mov_b32 s26, {magic(36)}')
    for i in range(9):
        k(f'v_add_u32 v19, {64*i}, v1')
        k(f'v_mul_hi_u32 v20, v19, s26')
        k(f'v_mul_u32_u24 v21, 36, v20')
        k(f'v_sub_u32 v21, v19, v21')
        k(f'v_mul_u32_u24 v20, 9216, v20')
        k(f'v_lshl_add_u32 v{2+i}, v21, 4, v20')
        if i % 4: k(f'v_subrev_u32 v{2+i}, {(i%4)*1024}, v{2+i}')
    k('v_lshlrev_b32 v11, 4, v1')
    k('v_lshrrev_b32 v19, 5, v1')
    k('v_bfe_u32 v20, v1, 4, 1')
    k('v_bfe_u32 v21, v1, 2, 2')
    k('v_and_b32 v22, 3, v1')
    k('v_lshl_add_u32 v23, v19, 2, v21')
    k('v_lshlrev_b32 v20, 5, v20')
    k('v_lshl_add_u32 v20, v22, 3, v20')
    k('v_mul_u32_u24 v12, 576, v23')
    k('v_add_u32 v12, v12, v20')
    k('v_lshl_add_u32 v14, v23, 7, v20')
    k('v_lshrrev_b32 v21, 1, v21')
    k('v_lshl_add_u32 v14, v21, 6, v14')
    k('s_waitcnt lgkmcnt(0)')
    srd(k, 8, 4, 5, 5308416); srd(k, 12, 6, 7, 5308416); srd(k, 16, 24, 25, WS_END)
    k('s_mul_i32 s30, s20, 147456\ns_mul_i32 s27, s21, 576\ns_add_u32 s30, s30, s27')
    k(f's_add_u32 s31, s30, {9*589824}')
    k('s_mul_i32 s27, s23, 589824\ns_add_u32 s30, s30, s27')
    k('s_lshl_b32 s28, s22, 2\ns_add_u32 s28, s28, s20')
    k(f's_mul_i32 s32, s28, 36864\ns_add_u32 s32, s32, {WS_HF}')
    k('s_add_u32 s33, s32, 36864')
    k('s_lshl_b32 s27, s23, 12\ns_add_u32 s32, s32, s27')
    k(f's_mul_i32 s34, s21, {288*1152}\ns_mul_i32 s27, s20, {72*1152}\ns_add_u32 s34, s34, s27')
    k('s_add_u32 s35, s34, 1152')
    k('s_lshl_b32 s27, s23, 7\ns_add_u32 s34, s34, s27')
    k(f's_lshl_b32 s36, s21, 6\ns_add_u32 s36, s36, s28\ns_mul_i32 s36, s36, 36864\ns_add_u32 s36, s36, {WS_P}')
    k('s_add_u32 s37, s36, 36864')
    k('s_lshl_b32 s27, s23, 12\ns_add_u32 s36, s36, s27')
    k('s_mul_i32 s38, s20, 9216')
    k('v_and_b32 v19, 31, v1')
    k('v_lshlrev_b32 v19, 6, v19')
    k(f's_lshl_b32 s27, s28, 11\ns_add_u32 s27, s27, {WS_ST}')
    for i in range(4):
        k.vmem(f'buffer_load_dwordx4 v[{32+4*i}:{35+4*i}], v19, s[16:19], s27 offen offset:{16*i}', 'st')

    def group(j):
        out = []
        slot = (j % 4) * SLOT
        if j == 9:
            out.append(('v_lshrrev_b32 v23, 3, v1', None))
            out.append(('v_bfe_u32 v240, v1, 4, 1', None))
            out.append(('v_lshlrev_b32 v240, 2, v240', None))
            out.append(('v_and_b32 v241, 7, v1', None))
            out.append(('v_xor_b32 v241, v241, v240', None))
            out.append(('v_mul_u32_u24 v23, 1152, v23', None))
            out.append(('v_lshl_add_u32 v2, v241, 4, v23', None))
            for i in range(1, 9):
                out.append((f'v_add_u32 v{2+i}, {i*9216 - (i%4)*1024}, v2', None))
        for i in range(9):
            pre = f's_add_u32 m0, s38, {slot + i*1024}\n' if i % 4 == 0 else ''
            if j < 9:
                out.append((pre + f'buffer_load_dwordx4 v{2+i}, s[8:11], s30 offen offset:{(i%4)*1024} lds', f'g{j}'))
            else:
                out.append((pre + f'buffer_load_dwordx4 v{2+i}, s[12:15], s34 offen offset:{(i%4)*1024} lds', f'g{j}'))
        if j < 9:
            hb = 176 + (j % 4) * 16
            for i in range(4):
                out.append((f'buffer_load_dwordx4 v[{hb+4*i}:{hb+4*i+3}], v11, s[16:19], s32 offen offset:{1024*i}', f'g{j}'))
            out.append((f's_add_u32 s30, s30, 589824\ns_cmp_ge_u32 s30, s31\ns_cselect_b32 s27, {9*589824}, 0\ns_sub_u32 s30, s30, s27', None))
            out.append((f's_add_u32 s32, s32, 4096\ns_cmp_ge_u32 s32, s33\ns_cselect_b32 s27, 36864, 0\ns_sub_u32 s32, s32, s27', None))
        else:
            out.append((f's_add_u32 s34, s34, 128\ns_cmp_ge_u32 s34, s35\ns_cselect_b32 s27, 1152, 0\ns_sub_u32 s34, s34, s27', None))
        return out
    def emit_item(it):
        t, tag = it
        if tag is None: k(t)
        else:
            ls = t.split('\n')
            for l in ls[:-1]: k(l)
            k.vmem(ls[-1], tag)
    for j in range(3):
        for it in group(j): emit_item(it)
    k.wait_vm('st')
    for i in range(1, 8):
        k(f'v_add_f32 v32, v32, v{32+2*i}')
        k(f'v_add_f32 v33, v33, v{33+2*i}')
    k(f'v_mul_f32 v32, {1.0/576!r}, v32')
    k(f'v_mul_f32 v33, {1.0/576!r}, v33')
    k('v_fma_f32 v33, -v32, v32, v33')
    k('v_max_f32 v33, 0, v33')
    k('v_add_f32 v33, 0x3727c5ac, v33')
    k('v_rsq_f32 v17, v33')
    k('v_mul_f32 v18, v32, v17')
    k('v_sub_f32 v18, 0, v18')

    def norm(ks):
        j, kk = divmod(ks, 4)
        src = 176 + (j % 4) * 16 + 4 * kk
        dst = 24 + (ks % 2) * 4
        out = []
        for i in range(4):
            t0, t1 = (19, 20) if i % 2 == 0 else (21, 22)
            out += [f'v_lshlrev_b32 v{t0}, 16, v{src+i}', f'v_and_b32 v{t1}, 0xffff0000, v{src+i}',
                    f'v_fma_f32 v{t0}, v{t0}, v17, v18', f'v_fma_f32 v{t1}, v{t1}, v17, v18',
                    f'v_cvt_pk_bf16_f32 v{dst+i}, v{t0}, v{t1}']
        return out
    def conv1(kk):
        b = 32 + (kk // 2) * 16 + (kk % 2) * 8
        out = [f'v_cvt_pk_bf16_f32 v{b+i}, v{b+2*i}, v{b+2*i+1}' for i in range(4)]
        out += [f'v_pk_max_i16 v{b+i}, v{b+i}, 0' for i in range(4)]
        return out
    def epi2(j):
        b = 176 + (j % 2) * 32
        out = []
        for f in range(4):
            bb = b + f * 8
            out += [(f'v_cvt_pk_bf16_f32 v{bb+i}, v{bb+2*i}, v{bb+2*i+1}', None) for i in range(4)]
            out.append((f'buffer_store_dwordx4 v[{bb}:{bb+3}], v11, s[16:19], s36 offen offset:{1024*f} {PSTORE}', f'p{j}'))
        out.append(('s_add_u32 s36, s36, 4096\ns_cmp_ge_u32 s36, s37\ns_cselect_b32 s27, 36864, 0\ns_sub_u32 s36, s36, s27', None))
        return out

    frags = []
    for j in range(18):
        for idx in range(36):
            if j < 9:
                kk, t = divmod(idx, 9)
                o = kk * 9216 + 64 * t
                acc = 32 + 16 * t
                frags.append(dict(j=j, idx=idx, addr=13, o1=o, o2=o + 4608, acc=acc, B=24 + ((4*j+kk) % 2) * 4, first=(j == 0 and kk == 0)))
            else:
                kk, u = divmod(idx, 2)
                o = kk * 2048
                acc = 176 + (j % 2) * 32 + 16 * u
                frags.append(dict(j=j, idx=idx, addr=15 + u, o1=o, o2=o + 1024, acc=acc, B=32 + (kk // 2) * 16 + (kk % 2) * 8, first=(kk == 0)))
    N = len(frags)
    fill = [[] for _ in range(N)]
    for ks in range(1, 36):
        L = norm(ks); base = (ks - 1) * 9
        if 'nonorm' in OPT: L = []
        for i, t in enumerate(L): fill[base + i // 3].append((t, None))
    for i, t in enumerate(conv1(0)): fill[9 * 36 - 9 + 5 + i // 3].append((t, None))
    for kk in range(1, 18):
        base = 9 * 36 + (kk - 1) * 2
        for i, t in enumerate(conv1(kk)): fill[base + i // 4].append((t, None))
    for j in range(9, 17):
        base = (j + 1) * 36 + 3
        for i, it in enumerate(epi2(j)): fill[base + i // 2].append(it)
    for j in range(0, 15):
        g = group(j + 3)
        base = j * 36 + 18
        pos = 0
        for it in g:
            if 'nodma' in OPT and it[1] is not None and ' lds' in it[0] and 'v2,' not in it[0]: continue
            fill[base + pos].append(it)
            if it[1] is not None: pos += 2
            elif j + 3 == 9: pos += 0
        assert pos <= 34, pos

    def reads(m):
        f = frags[m]
        if f['idx'] == 0:
            slot = (f['j'] % 4) * SLOT
            if f['j'] < 9: k(f'v_add_u32 v13, {slot}, v12')
            else:
                k(f'v_add_u32 v15, {slot}, v14'); k('v_xor_b32 v16, 64, v15')
        a = (m % NB) * 4
        k.lds_op(f'ds_read_b64_tr_b16 a[{a}:{a+1}], v{f["addr"]} offset:{f["o1"]}', f'f{m}')
        k.lds_op(f'ds_read_b64_tr_b16 a[{a+2}:{a+3}], v{f["addr"]} offset:{f["o2"]}', f'f{m}')

    stamp(k)
    k.wait_vm('g0')
    k('s_barrier')
    stamp(k)
    for m in range(D): reads(m)
    for t in norm(0): k(t)
    for n in range(N):
        f = frags[n]
        if f['idx'] == 18 and f['j'] < 17:
            k.wait_vm(f'g{f["j"]+1}')
            k('s_barrier')
            stamp(k)
        if n + D < N: reads(n + D)
        if 'w2' in OPT:
            if n % 2 == 0: k.wait_lg(f'f{min(n+1, N-1)}')
        elif 'w3' in OPT:
            if n % 3 == 0: k.wait_lg(f'f{min(n+2, N-1)}')
        else: k.wait_lg(f'f{n}')
        a = (n % NB) * 4
        c = '0' if f['first'] else f'v[{f["acc"]}:{f["acc"]+15}]'
        k(f'v_mfma_f32_32x32x16_bf16 v[{f["acc"]}:{f["acc"]+15}], a[{a}:{a+3}], v[{f["B"]}:{f["B"]+3}], {c}')
        for it in fill[n]: emit_item(it)
    for it in epi2(17): emit_item(it)
    if STAMPS: stamp(k); k('s_waitcnt vmcnt(0)')
    dump_stamps(k, 16, 20, 2)
    k(f'L_{k.name}_done:')
    k('s_endpgm')
    return k


OOB = 0x7ff00000
def gen_k2():
    k = Kern('wo_kernel', 256, 256, 73728 + 82944 + 64, nvgpr=104)
    WOB = 73728
    ids(k, 256)
    if STAMPS: k('s_memrealtime s[92:93]')
    stamp(k)
    k('s_load_dwordx2 s[4:5], s[0:1], 0')
    k('s_load_dwordx2 s[6:7], s[0:1], 24')
    k('s_load_dwordx2 s[24:25], s[0:1], 72')
    k('v_lshrrev_b32 v2, 6, v0')
    k('v_and_b32 v1, 63, v0')
    k('v_readfirstlane_b32 s20, v2')
    k('s_and_b32 s26, s2, 7\ns_lshr_b32 s27, s2, 3')
    k('s_lshr_b32 s21, s26, 1\ns_lshl_b32 s21, s21, 3\ns_lshr_b32 s28, s27, 2\ns_add_u32 s21, s21, s28')
    k('s_and_b32 s22, s26, 1\ns_lshl_b32 s22, s22, 2\ns_and_b32 s29, s27, 3\ns_add_u32 s22, s22, s29')
    k(f's_add_u32 s28, s28, s29\ns_mul_hi_u32 s29, s28, {magic(3)}\ns_mul_i32 s29, s29, 3\ns_sub_u32 s23, s28, s29')
    k('v_lshrrev_b32 v20, 3, v1\nv_and_b32 v21, 7, v1\nv_lshrrev_b32 v22, 1, v20\nv_xor_b32 v21, v21, v22')
    k('v_mul_u32_u24 v20, 1152, v20\nv_lshl_add_u32 v2, v21, 4, v20')
    k(f'v_xor_b32 v21, 4, v21\nv_lshl_add_u32 v3, v21, 4, v20\nv_add_u32 v3, {8*1152-1024}, v3')
    k(f's_mov_b32 s39, {magic(9)}\ns_mul_i32 s38, s20, 7')
    for j in range(7):
        k(f's_add_u32 s{80+j}, s38, {j}\ns_min_u32 s{80+j}, s{80+j}, 26\ns_lshl_b32 s37, s{80+j}, 6')
        k(f'v_add_u32 v20, s37, v1\nv_mul_hi_u32 v21, v20, s39\nv_mul_u32_u24 v22, 9, v21\nv_sub_u32 v22, v20, v22')
        k(f'v_mul_u32_u24 v21, 1152, v21\nv_lshl_add_u32 v{4+j}, v22, 4, v21')
        k(f's_lshl_b32 s{80+j}, s{80+j}, 10')
    k('s_waitcnt lgkmcnt(0)')
    srd(k, 8, 4, 5, 2359296); srd(k, 12, 6, 7, 663552); srd(k, 16, 24, 25, WS_END)
    k(f's_lshl_b32 s33, s21, 6\ns_lshl_b32 s34, s20, 4\ns_add_u32 s33, s33, s34')
    k(f's_mul_i32 s30, s33, 1152')
    k(f's_mul_i32 s31, s22, 144')
    k('s_mov_b32 s32, s23')
    k('s_lshl_b32 s35, s20, 11')
    for e in range(3):
        k(f's_mul_i32 s36, s32, 384\ns_add_u32 s36, s36, s30\ns_add_u32 s36, s36, {WS_O}')
        k(f's_mul_i32 s37, s32, {192*1152}\ns_add_u32 s37, s37, s31')
        for b in range(3):
            k(f's_add_u32 m0, s35, {(3*e+b)*8192}')
            k.vmem(f'buffer_load_dwordx4 v2, s[16:19], s36 offen lds', f'c{e}')
            k.vmem(f'buffer_load_dwordx4 v3, s[16:19], s36 offen offset:1024 lds', f'c{e}')
            if b < 2: k('s_add_u32 s36, s36, 128')
        for j in range(7):
            k(f's_add_u32 m0, s{80+j}, {WOB + e*27648}')
            k.vmem(f'buffer_load_dwordx4 v{4+j}, s[12:15], s37 offen lds', f'c{e}')
        if e < 2: k('s_add_u32 s32, s32, 1\ns_cmp_ge_u32 s32, 3\ns_cselect_b32 s32, 0, s32')
    k('v_and_b32 v20, 15, v1')
    k('v_lshrrev_b32 v21, 4, v1')
    k('v_bfe_u32 v22, v1, 2, 2')
    k('v_and_b32 v23, 3, v1')
    k('v_mul_u32_u24 v24, 1152, v20\nv_lshl_add_u32 v24, v21, 3, v24')
    k('s_add_u32 s36, s30, s31')
    for t in range(5):
        k.vmem(f'buffer_load_dwordx2 v[{84+2*t}:{85+2*t}], v24, s[8:11], s36 offen offset:{32*t}', 'x')
    k(f'v_lshl_add_u32 v11, v21, 2, v22\nv_mul_u32_u24 v11, 144, v11\nv_lshl_add_u32 v11, v23, 3, v11\nv_add_u32 v11, {WOB}, v11')
    k('v_lshrrev_b32 v25, 1, v21\nv_bfe_u32 v26, v20, 1, 3\nv_xor_b32 v25, v25, v26\nv_lshlrev_b32 v25, 4, v25')
    k('v_and_b32 v26, 1, v21\nv_lshl_add_u32 v25, v26, 3, v25\nv_lshl_add_u32 v25, v20, 7, v25\nv_add_u32 v12, s35, v25')
    for c in range(1, 4): k(f'v_xor_b32 v{12+c}, {32*c}, v12')
    k('s_mul_i32 s36, s22, 18\nv_add_u32 v25, s36, v21')
    k('v_lshrrev_b32 v26, 2, v25\nv_lshlrev_b32 v16, 10, v26')
    k('v_and_b32 v26, 1, v25\nv_lshl_add_u32 v16, v26, 9, v16')
    k('v_bfe_u32 v26, v25, 1, 1\nv_lshl_add_u32 v16, v26, 3, v16')
    k('s_and_b32 s36, s20, 1\ns_lshl_b32 s36, s36, 4\nv_add_u32 v26, s36, v20\nv_lshl_add_u32 v16, v26, 4, v16')
    k(f'v_mov_b32 v27, {OOB}')
    k('v_cmp_gt_u32 vcc, 2, v21\nv_cndmask_b32 v17, v27, v16, vcc')
    k('s_mov_b64 s[88:89], vcc')
    k('v_lshlrev_b32 v18, 6, v20\nv_cmp_eq_u32 vcc, 0, v21\nv_cndmask_b32 v18, v27, v18, vcc')
    k(f's_lshr_b32 s36, s33, 5\ns_mul_i32 s36, s36, 36864\ns_add_u32 s36, s36, {WS_HF}\ns_add_u32 s37, s36, 4096')
    k(f's_lshl_b32 s38, s33, 6\ns_lshl_b32 s39, s22, 3\ns_add_u32 s38, s38, s39\ns_add_u32 s38, s38, {WS_ST}')
    stamp(k)
    NB, D = 7, 5
    seq = []
    for e in range(3):
        for ks in range(6):
            for t in range(5): seq.append((e, ks, t))
    N = len(seq)
    def reads(m):
        e, ks, t = seq[m]
        if ks == 0 and t == 0:
            k.wait_vm(f'c{e}'); k('s_barrier'); stamp(k)
            if e > 0:
                k('v_add_u32 v11, 27648, v11')
                for c in range(4): k(f'v_add_u32 v{12+c}, 24576, v{12+c}')
        if t == 0:
            b = 76 + ((6*e+ks) % 2) * 4
            c0 = 2 * (ks % 2)
            k.lds_op(f'ds_read_b64 v[{b}:{b+1}], v{12+c0} offset:{(ks//2)*8192}', f'f{m}')
            k.lds_op(f'ds_read_b64 v[{b+2}:{b+3}], v{13+c0} offset:{(ks//2)*8192}', f'f{m}')
        a = 48 + (m % NB) * 4
        o = ks * 4608 + 32 * t
        k.lds_op(f'ds_read_b64_tr_b16 v[{a}:{a+1}], v11 offset:{o}', f'f{m}')
        k.lds_op(f'ds_read_b64_tr_b16 v[{a+2}:{a+3}], v11 offset:{o+2304}', f'f{m}')
    for m in range(D): reads(m)
    for n in range(N):
        e, ks, t = seq[n]
        if n + D < N: reads(n + D)
        k.wait_lg(f'f{n}')
        a = 48 + (n % NB) * 4; b = 76 + ((6*e+ks) % 2) * 4; c = 28 + 4 * t
        k(f'v_mfma_f32_16x16x32_bf16 v[{c}:{c+3}], v[{a}:{a+3}], v[{b}:{b+3}], {"0" if n < 5 else f"v[{c}:{c+3}]"}')
    stamp(k)
    k.wait_vm('x')
    k('v_mov_b32 v94, 0\nv_mov_b32 v95, 0')
    for t in range(5):
        c = 28 + 4 * t; x = 84 + 2 * t
        k(f'v_lshlrev_b32 v48, 16, v{x}\nv_and_b32 v49, 0xffff0000, v{x}\nv_lshlrev_b32 v50, 16, v{x+1}\nv_and_b32 v51, 0xffff0000, v{x+1}')
        for i in range(4): k(f'v_add_f32 v{c+i}, v{c+i}, v{48+i}')
        k(f'v_cvt_pk_bf16_f32 v{x}, v{c}, v{c+1}\nv_cvt_pk_bf16_f32 v{x+1}, v{c+2}, v{c+3}')
        if t < 4: k(f'buffer_store_dwordx2 v[{x}:{x+1}], v16, s[16:19], s36 offen offset:{1024*t}')
        else:
            k(f'buffer_store_dwordx2 v[{x}:{x+1}], v17, s[16:19], s37 offen')
            k(f'v_cndmask_b32 v52, 0, v{x}, s[88:89]\nv_cndmask_b32 v53, 0, v{x+1}, s[88:89]')
            x = 52
        for i in range(2):
            k(f'v_dot2c_f32_bf16 v94, 0x3f803f80, v{x+i}')
            k(f'v_dot2c_f32_bf16 v95, v{x+i}, v{x+i}')
    for swp in ('v_permlane32_swap_b32', 'v_permlane16_swap_b32'):
        k('v_mov_b32 v96, v94\nv_mov_b32 v97, v95')
        k(f'{swp} v94, v96\n{swp} v95, v97')
        k('v_add_f32 v94, v94, v96\nv_add_f32 v95, v95, v97')
    k('buffer_store_dwordx2 v[94:95], v18, s[16:19], s38 offen')
    if STAMPS: stamp(k); k('s_waitcnt vmcnt(0)')
    dump_stamps(k, 16, 20, 1)
    k(f'L_{k.name}_done:')
    k('s_endpgm')
    return k


def softmax_pair(k, p, dst, ep, em, tmp):
    mx, mn, a, b = tmp, tmp + 1, tmp + 2, tmp + 3
    k(f'v_max3_f32 v{mx}, v{p[0]}, v{p[1]}, v{p[2]}\nv_min3_f32 v{mn}, v{p[0]}, v{p[1]}, v{p[2]}')
    for i in range(3, 17, 2):
        k(f'v_max3_f32 v{mx}, v{mx}, v{p[i]}, v{p[i+1]}\nv_min3_f32 v{mn}, v{mn}, v{p[i]}, v{p[i+1]}')
    k(f'v_max_f32 v{mx}, v{mx}, v{p[17]}\nv_min_f32 v{mn}, v{mn}, v{p[17]}')
    k(f'v_mul_f32 v{mx}, s99, v{mx}\nv_mul_f32 v{mn}, s98, v{mn}')
    for i in range(18):
        k(f'v_fma_f32 v{ep+i}, v{p[i]}, s98, v{mx}\nv_fma_f32 v{em+i}, v{p[i]}, s99, v{mn}')
    for i in range(18):
        k(f'v_exp_f32 v{ep+i}, v{ep+i}\nv_exp_f32 v{em+i}, v{em+i}')
    k(f'v_add_f32 v{a}, v{ep}, v{ep+1}\nv_add_f32 v{b}, v{em}, v{em+1}')
    for i in range(2, 18):
        k(f'v_add_f32 v{a}, v{a}, v{ep+i}\nv_add_f32 v{b}, v{b}, v{em+i}')
    k(f'v_rcp_f32 v{a}, v{a}\nv_rcp_f32 v{b}, v{b}')
    for i in range(18):
        k(f'v_mul_f32 v{ep+i}, v{ep+i}, v{a}\nv_mul_f32 v{em+i}, v{em+i}, v{b}')
    for i in range(9):
        k(f'v_cvt_pk_bf16_f32 v{dst+i}, v{ep+2*i}, v{ep+2*i+1}\nv_cvt_pk_bf16_f32 v{dst+9+i}, v{em+2*i}, v{em+2*i+1}')

def mask64(k, s, lo, hi):
    k(f's_mov_b32 s{s}, {lo:#x}\ns_mov_b32 s{s+1}, {hi:#x}')

def gen_k1():
    k = Kern('qkv_kernel', 256, 256, 163840, nvgpr=256, nsgpr=102)
    SLOT = 32768; WP = 131072; CSB = WP + 3072; KVT = CSB + 512; DUMMY = KVT + 3328
    ids(k, 256)
    if STAMPS: k('s_memrealtime s[92:93]')
    stamp(k)
    k('s_load_dwordx4 s[4:7], s[0:1], 0')
    k('s_load_dwordx2 s[28:29], s[0:1], 16')
    k('s_load_dwordx4 s[24:27], s[0:1], 64')
    k('v_lshrrev_b32 v2, 6, v0')
    k('v_and_b32 v1, 63, v0')
    k('v_readfirstlane_b32 s20, v2')
    k('s_and_b32 s30, s2, 7\ns_lshr_b32 s31, s2, 3')
    k('s_lshr_b32 s21, s30, 1\ns_lshl_b32 s21, s21, 2\ns_lshr_b32 s32, s31, 3\ns_add_u32 s21, s21, s32')
    k('s_and_b32 s22, s30, 1\ns_lshl_b32 s22, s22, 3\ns_and_b32 s33, s31, 7\ns_add_u32 s22, s22, s33')
    k('s_lshl_b32 s32, s32, 1\ns_add_u32 s23, s32, s33\ns_cmp_ge_u32 s23, 9\ns_cselect_b32 s32, 9, 0\ns_sub_u32 s23, s23, s32')
    k('v_lshrrev_b32 v20, 3, v1\nv_and_b32 v21, 7, v1\nv_lshrrev_b32 v22, 1, v20\nv_xor_b32 v21, v21, v22')
    k('v_mul_u32_u24 v20, 1152, v20\nv_lshl_add_u32 v2, v21, 4, v20')
    k(f'v_xor_b32 v21, 4, v21\nv_lshl_add_u32 v3, v21, 4, v20\nv_add_u32 v3, {8*1152-1024}, v3')
    k(f'v_add_u32 v4, {16*1152-2048}, v2\nv_add_u32 v5, {16*1152-2048}, v3')
    k('v_lshrrev_b32 v20, 4, v1\nv_lshlrev_b32 v21, 2, v20\nv_sub_u32 v21, v1, v21\nv_and_b32 v21, 15, v21')
    k('v_mul_u32_u24 v22, 52, v21\nv_lshrrev_b32 v22, 8, v22')
    k('v_mul_u32_u24 v23, 5, v22\nv_sub_u32 v23, v21, v23')
    k('v_mul_u32_u24 v20, 3456, v20\nv_mul_u32_u24 v22, 1152, v22\nv_add_u32 v20, v20, v22\nv_lshl_add_u32 v6, v23, 4, v20')
    for i in range(1, 4): k(f'v_add_u32 v{6+i}, {i*(4*3456-1024)}, v6')
    mask64(k, 72, ~((1 << 15) | (1 << 19)) & 0xffffffff, ~((1 << 7) | (1 << 27)) & 0xffffffff)
    k('s_waitcnt lgkmcnt(0)')
    srd(k, 8, 4, 5, 2359296); srd(k, 12, 6, 7, 1990656); srd(k, 16, 26, 27, WS_END)
    srd(k, 76, 28, 29, 20736); srd(k, 80, 24, 25, 256)
    k('s_lshl_b32 s33, s21, 7\ns_lshl_b32 s32, s20, 5\ns_add_u32 s33, s33, s32')
    k('s_mul_i32 s30, s33, 1152\ns_add_u32 s31, s30, 1152\ns_lshl_b32 s32, s23, 7\ns_add_u32 s30, s30, s32')
    k(f's_mul_i32 s34, s20, {16*3456}\ns_mul_i32 s32, s22, 72\ns_add_u32 s34, s34, s32\ns_add_u32 s35, s34, 1990656')
    k(f's_mul_i32 s32, s23, {64*3456}\ns_add_u32 s34, s34, s32')
    k('s_lshl_b32 s38, s20, 12')
    def group(j):
        slot = (j % 4) * SLOT
        out = [(f's_add_u32 m0, s38, {slot}', None)]
        for i in range(4): out.append((f'buffer_load_dwordx4 v{2+i}, s[8:11], s30 offen offset:{1024*i} lds', f'g{j}'))
        out.append((f's_add_u32 m0, s38, {slot+16384}', None))
        for i in range(4): out.append((f's_mov_b64 exec, s[72:73]\nbuffer_load_dwordx4 v{6+i}, s[12:15], s34 offen offset:{1024*i} lds', f'g{j}'))
        out.append(('s_add_u32 s30, s30, 128\ns_cmp_ge_u32 s30, s31\ns_cselect_b32 s32, 1152, 0\ns_sub_u32 s30, s30, s32', None))
        out.append((f's_add_u32 s34, s34, {64*3456}\ns_cmp_ge_u32 s34, s35\ns_cselect_b32 s32, 1990656, 0\ns_sub_u32 s34, s34, s32', None))
        return out
    def emit_item(it):
        t, tag = it
        if tag is None: k(t)
        else:
            ls = t.split('\n')
            for l in ls[:-1]: k(l)
            k.vmem(ls[-1], tag)
            if 'exec' in t: k('s_mov_b64 exec, -1')
    for it in group(0): emit_item(it)
    k(f's_mov_b32 s36, {magic(10)}\ns_mul_i32 s37, s22, 1296\ns_lshl_b32 s39, s20, 6')
    k(f'v_mov_b32 v27, {OOB}')
    for i in range(3):
        k(f'v_add_u32 v20, s39, v1\nv_add_u32 v20, {256*i}, v20')
        k('v_mul_hi_u32 v21, v20, s36\nv_mul_u32_u24 v22, 10, v21\nv_sub_u32 v22, v20, v22')
        k('v_cmp_lt_u32 vcc, 17, v21\nv_subbrev_co_u32 v23, vcc, 0, v21, vcc' if False else 'v_add_u32 v23, -2, v21\nv_cmp_gt_u32 vcc, 18, v21\nv_cndmask_b32 v23, v23, v21, vcc')
        k('v_mul_u32_u24 v23, 36, v23\nv_lshl_add_u32 v23, v22, 2, v23')
        k('v_cmp_gt_u32 vcc, 9, v22\nv_cndmask_b32 v23, v27, v23, vcc')
        k('v_cmp_gt_u32 vcc, 38, v21\nv_cndmask_b32 v23, v27, v23, vcc')
        k('v_and_b32 v24, 62, v21\nv_cmp_ne_u32 vcc, 18, v24\nv_cndmask_b32 v23, v27, v23, vcc')
        k(f's_lshl_b32 s32, s39, 2\ns_add_u32 m0, s32, {WP + 1024*i}')
        k.vmem('buffer_load_dword v23, s[76:79], s37 offen lds', 'g0')
    for it in group(1): emit_item(it)
    k('v_mov_b32 v172, 0x3f803f80\nv_mov_b32 v173, 0x3f803f80\nv_mov_b32 v174, 0x3f803f80\nv_mov_b32 v175, 0x3f803f80')
    k('v_and_b32 v20, 3, v1\nv_lshlrev_b32 v20, 2, v20\nv_add_u32 v20, 15, v20\nv_and_b32 v20, 15, v20\nv_lshlrev_b32 v20, 4, v20')
    k('v_lshl_add_u32 v20, v1, 8, v20\ns_lshl_b32 s32, s20, 15\ns_add_u32 s32, s32, 16384\nv_add_u32 v20, s32, v20')
    k('ds_write_b128 v20, v[172:175]')
    k('v_mov_b32 v28, 0\nv_mov_b32 v29, 0\nv_mov_b32 v30, 0\nv_mov_b32 v31, 0')
    k(f'v_min_u32 v20, 207, v0\nv_lshlrev_b32 v20, 4, v20\nv_add_u32 v20, {KVT}, v20')
    k('ds_write_b128 v20, v[28:31]')
    for it in group(2): emit_item(it)
    k('v_lshrrev_b32 v19, 5, v1')
    k('v_bfe_u32 v20, v1, 4, 1')
    k('v_bfe_u32 v21, v1, 2, 2')
    k('v_and_b32 v22, 1, v1')
    k('v_bfe_u32 v23, v1, 1, 1')
    k('v_and_b32 v24, 31, v1\nv_bfe_u32 v25, v24, 1, 3\nv_xor_b32 v25, v25, v19\nv_lshlrev_b32 v25, 4, v25\nv_lshl_add_u32 v25, v24, 7, v25\nv_add_u32 v10, s38, v25')
    for kk in range(1, 4): k(f'v_xor_b32 v{10+kk}, {32*kk}, v10')
    k('v_lshl_add_u32 v24, v19, 3, v21\nv_lshlrev_b32 v24, 8, v24\nv_add_u32 v24, 16384, v24')
    k('v_lshl_add_u32 v25, v22, 1, v20')
    k('v_lshl_add_u32 v25, v21, 2, v25')
    for T in range(3):
        k(f'v_add_u32 v26, {5*T}, v25\nv_and_b32 v26, 15, v26\nv_lshl_add_u32 v26, v26, 4, v24\nv_lshl_add_u32 v{14+T}, v23, 3, v26')
    k('v_lshl_add_u32 v25, v20, 1, v23')
    k('v_mul_u32_u24 v26, 5, v25\nv_lshl_add_u32 v26, v22, 1, v26\nv_add_u32 v26, 2, v26')
    k('v_cmp_eq_u32 vcc, 3, v25\nv_cndmask_b32 v26, v26, 15, vcc' if False else 'v_mov_b32 v28, 15\nv_cmp_eq_u32 vcc, 3, v25\nv_cndmask_b32 v26, v26, v28, vcc')
    k('v_lshl_add_u32 v26, v21, 2, v26\nv_and_b32 v26, 15, v26\nv_lshl_add_u32 v17, v26, 4, v24')
    k('v_mov_b32 v18, v14')
    for T in range(1, 4):
        k(f's_cmp_eq_u32 s20, {T}\ns_cselect_b64 s[74:75], -1, 0\nv_cndmask_b32 v18, v18, v{14+T}, s[74:75]')
    k(f'v_mul_u32_u24 v24, 18, v19\nv_add_u32 v24, v24, v21\nv_mul_u32_u24 v24, 40, v24\nv_add_u32 v24, {WP}, v24')
    k(f'v_mul_u32_u24 v28, 40, v21\nv_add_u32 v28, {WP + 38*40}, v28')
    k('v_lshl_add_u32 v29, v25, 3, v24\nv_cmp_eq_u32 vcc, v22, v19\nv_cndmask_b32 v232, v28, v29, vcc')
    k('v_add_u32 v29, 32, v24\nv_and_b32 v30, 19, v1\nv_cmp_eq_u32 vcc, v30, v19\nv_cndmask_b32 v233, v28, v29, vcc')
    k('s_mov_b32 s98, 0x3fb8aa3b\ns_mov_b32 s99, 0xbfb8aa3b')
    stamp(k)
    NB, D = 8, 5
    seq = [(j, kk, t) for j in range(9) for kk in range(4) for t in range(5)]
    N = len(seq)
    fill = [[] for _ in range(N)]
    for j in range(0, 6):
        pos = 0
        for it in group(j + 3):
            fill[j * 20 + 10 + pos].append(it)
            if it[1] is not None: pos += 2
    def reads(m):
        j, kk, t = seq[m]
        if kk == 0 and t == 0 and j > 0 and j % 2 == 0:
            for r in range(10, 19): k(f'v_xor_b32 v{r}, 0x10000, v{r}')
        so = (j % 2) * SLOT
        if t == 0:
            b = 160 + ((4*j+kk) % 3) * 4
            k.lds_op(f'ds_read_b128 v[{b}:{b+3}], v{10+kk} offset:{so}', f'f{m}')
        a = 128 + (m % NB) * 4
        k.lds_op(f'ds_read_b64_tr_b16 v[{a}:{a+1}], v{14+t} offset:{so + kk*4096}', f'f{m}')
        k.lds_op(f'ds_read_b64_tr_b16 v[{a+2}:{a+3}], v{14+t} offset:{so + kk*4096 + 1024}', f'f{m}')
    k.wait_vm('g0', 'lgkmcnt(0)')
    k('s_barrier')
    stamp(k)
    for i, (reg, adr, o) in enumerate([(212, 232, 0), (214, 232, 160), (216, 232, 320), (218, 232, 480), (220, 232, 640),
                                       (222, 233, 0), (224, 233, 160), (226, 233, 320), (228, 233, 480), (230, 233, 640)]):
        k.lds_op(f'ds_read_b64_tr_b16 v[{reg}:{reg+1}], v{adr} offset:{o}', 'wphi')
    k.wait_lg('wphi')
    for m in range(D): reads(m)
    for n in range(N):
        j, kk, t = seq[n]
        if kk == 2 and t == 0 and j < 8:
            k.wait_vm(f'g{j+1}'); k('s_barrier')
            if j in (0, 4): stamp(k)
        if n + D < N: reads(n + D)
        k.wait_lg(f'f{n}')
        a = 128 + (n % NB) * 4; b = 160 + ((4*j+kk) % 3) * 4
        first = (j == 0 and kk == 0)
        if t < 4:
            c = 32 + 16 * t
            k(f'v_mfma_f32_32x32x16_bf16 v[{c}:{c+15}], v[{a}:{a+3}], v[{b}:{b+3}], {"0" if first else f"v[{c}:{c+15}]"}')
        else:
            k(f'v_mfma_f32_32x32x16_bf16 v[112:127], v[{a}:{a+3}], v[172:175], {"0" if first else "v[112:127]"}')
        if t == 1:
            k(f'v_mfma_f32_32x32x16_bf16 v[96:111], v[{b}:{b+3}], v[{b}:{b+3}], {"0" if first else "v[96:111]"}')
        for it in fill[n]: emit_item(it)
    stamp(k)
    k(f's_lshl_b32 s32, s20, 7\ns_add_u32 s32, s32, {CSB}\nv_lshlrev_b32 v20, 6, v19\nv_add_u32 v21, s32, v20\nv_add_u32 v20, {CSB}, v20')
    mask64(k, 74, 0xaaaaaaaa, 0xaaaaaaaa); mask64(k, 84, 0xcccccccc, 0xcccccccc); mask64(k, 86, 0xff00ff00, 0xff00ff00)
    mask64(k, 88, 0xffff0000, 0xffff0000); mask64(k, 90, 0x0f0f0f0f, 0xf0f0f0f0); mask64(k, 94, 0, 0xffffffff); mask64(k, 96, 1, 1)
    for i in range(8): k(f'v_cndmask_b32 v{96+i}, v{96+2*i}, v{97+2*i}, s[74:75]')
    for i in range(4): k(f'v_cndmask_b32 v{96+i}, v{96+2*i}, v{97+2*i}, s[84:85]')
    for i in range(2): k(f'v_cndmask_b32 v{96+i}, v{96+2*i}, v{97+2*i}, s[86:87]')
    k('v_cndmask_b32 v96, v96, v97, s[88:89]')
    k('v_cndmask_b32 v96, 0, v96, s[90:91]')
    k('s_mov_b64 exec, s[96:97]')
    for i in range(4): k(f'ds_write_b128 v21, v[{112+4*i}:{115+4*i}] offset:{16*i}')
    k('s_mov_b64 exec, -1')
    k('v_mov_b32 v97, v96\nv_permlane32_swap_b32 v96, v97\nv_add_f32 v96, v96, v97')
    k(f'v_mul_f32 v98, {-1.0/576!r}, v92')
    k(f'v_mul_f32 v96, {1.0/576!r}, v96')
    k('v_fma_f32 v96, -v98, v98, v96\nv_max_f32 v96, 0, v96\nv_add_f32 v96, 0x3727c5ac, v96\nv_rsq_f32 v100, v96')
    k('v_mov_b32 v99, v98\nv_mov_b32 v101, v100')
    k('s_waitcnt lgkmcnt(0)\ns_barrier')
    for i in range(15):
        T, j = divmod(i, 4)
        k.lds_op(f'ds_read_b128 v[{128+4*i}:{131+4*i}], v20 offset:{128*T + 16*j}', f'cs{i}')
    order = [4, 5, 6, 7, 13, 0, 1, 2, 3, 12, 8, 9, 10, 11, 14]
    dstp = {}
    for j in range(4): dstp[j] = 192 + 2 * j; dstp[4 + j] = 202 + 2 * j; dstp[8 + j] = 176 + 64 + 2 * j
    dstp[12] = 200; dstp[13] = 210
    VP = 234
    for j in range(4): dstp[8 + j] = VP + 2 * j
    dstp[14] = VP + 8
    k('s_waitcnt lgkmcnt(0)')
    for i in order:
        a = 32 + 4 * i; c = 128 + 4 * i
        for h in (0, 2):
            k(f'v_pk_fma_f32 v[{a+h}:{a+h+1}], v[{c+h}:{c+h+1}], v[98:99], v[{a+h}:{a+h+1}]')
        for h in (0, 2):
            k(f'v_pk_mul_f32 v[{a+h}:{a+h+1}], v[{a+h}:{a+h+1}], v[100:101]')
        k(f'v_cvt_pk_bf16_f32 v{dstp[i]}, v{a}, v{a+1}\nv_cvt_pk_bf16_f32 v{dstp[i]+1}, v{a+2}, v{a+3}')
    for (src, p0, p1) in ((202, 32, 48), (192, 64, 80)):
        k(f'v_mfma_f32_32x32x16_bf16 v[{p0}:{p0+15}], v[212:215], v[{src}:{src+3}], 0')
        k(f'v_mfma_f32_32x32x16_bf16 v[{p1}:{p1+15}], v[222:225], v[{src}:{src+3}], 0')
        k(f'v_mfma_f32_32x32x16_bf16 v[{p0}:{p0+15}], v[216:219], v[{src+4}:{src+7}], v[{p0}:{p0+15}]')
        k(f'v_mfma_f32_32x32x16_bf16 v[{p1}:{p1+15}], v[226:229], v[{src+4}:{src+7}], v[{p1}:{p1+15}]')
    for i in range(9): k(f'v_cndmask_b32 v{114+i}, v{VP+i}, v{VP+i+1}, s[94:95]')
    k('v_mov_b32 v123, 0x3f80')
    for (src, p0, p1) in ((202, 32, 48), (192, 64, 80)):
        k(f'v_mfma_f32_32x32x8_bf16 v[{p0}:{p0+15}], v[220:221], v[{src+8}:{src+9}], v[{p0}:{p0+15}]')
        k(f'v_mfma_f32_32x32x8_bf16 v[{p1}:{p1+15}], v[230:231], v[{src+8}:{src+9}], v[{p1}:{p1+15}]')
    k('v_and_b32 v20, 31, v1\ns_lshl_b32 s32, s20, 5\nv_add_u32 v20, s32, v20\nv_mul_u32_u24 v20, 112, v20\nv_mul_u32_u24 v21, 14336, v19\nv_add_u32 v20, v20, v21')
    k('v_lshrrev_b32 v21, 4, v1\nv_bfe_u32 v22, v1, 2, 2\nv_and_b32 v23, 3, v1')
    k('v_lshl_add_u32 v24, v21, 2, v22\nv_mul_u32_u24 v24, 112, v24\nv_lshl_add_u32 v24, v23, 3, v24')
    k('s_lshr_b32 s32, s20, 1\ns_mul_i32 s36, s32, 14336\nv_add_u32 v24, s36, v24')
    k('s_and_b32 s37, s20, 1\ns_lshl_b32 s39, s37, 5\ns_add_u32 s39, s39, 72\nv_add_u32 v25, s39, v24')
    k(f'v_mov_b32 v27, {OOB}')
    k('v_and_b32 v26, 15, v1\ns_lshl_b32 s39, s37, 4\nv_add_u32 v26, s39, v26')
    k('v_mul_u32_u24 v28, 144, v26\nv_lshl_add_u32 v28, v21, 4, v28\nv_cmp_gt_u32 vcc, 19, v26\nv_cndmask_b32 v28, v27, v28, vcc')
    k('v_cmp_eq_u32 vcc, 0, v21\nv_cndmask_b32 v29, v27, v28, vcc')
    k(f's_lshl_b32 s36, s22, 4\ns_add_u32 s36, s36, s21\ns_lshl_b32 s39, s36, 1\ns_add_u32 s39, s39, s32\ns_mul_i32 s39, s39, 2736\ns_add_u32 s39, s39, {WS_KV}')
    stamp(k)
    softmax_pair(k, list(range(32, 48)) + [48, 49], 96, 128, 146, 164)
    for i in range(7): k(f'ds_write_b128 v20, v[{96+4*i}:{99+4*i}] offset:{16*i}')
    k('s_waitcnt lgkmcnt(0)\ns_barrier')
    stamp(k)
    for ks in range(4):
        b = 128 + 16 * ks
        for h in range(2): k.lds_op(f'ds_read_b64_tr_b16 v[{b+2*h}:{b+2*h+1}], v25 offset:{ks*3584 + h*1792}', f'kv{ks}')
        for t in range(3):
            for h in range(2): k.lds_op(f'ds_read_b64_tr_b16 v[{b+4+4*t+2*h}:{b+5+4*t+2*h}], v24 offset:{ks*3584 + h*1792 + 32*t}', f'kv{ks}')
        if ks >= 1:
            kp = ks - 1; bp = 128 + 16 * kp
            k.wait_lg(f'kv{kp}')
            for t in range(3):
                c = 192 + 4 * t
                k(f'v_mfma_f32_16x16x32_bf16 v[{c}:{c+3}], v[{bp+4+4*t}:{bp+7+4*t}], v[{bp}:{bp+3}], {"0" if kp == 0 else f"v[{c}:{c+3}]"}')
    k.wait_lg('kv3')
    for t in range(3):
        c = 192 + 4 * t
        k(f'v_mfma_f32_16x16x32_bf16 v[{c}:{c+3}], v[{176+4+4*t}:{176+7+4*t}], v[176:179], v[{c}:{c+3}]')
    k('buffer_store_dwordx4 v[192:195], v28, s[16:19], s39 offen sc1')
    k('buffer_store_dwordx4 v[196:199], v28, s[16:19], s39 offen offset:64 sc1')
    k('buffer_store_dwordx4 v[200:203], v29, s[16:19], s39 offen offset:128 sc1')
    k('s_waitcnt vmcnt(0)\ns_barrier')
    stamp(k)
    k('v_mov_b32 v30, 1\nv_mov_b32 v31, s36')
    lab = k.label('noflag')
    k(f's_cmp_lg_u32 s20, 0\ns_cbranch_scc1 {lab}')
    k('s_mov_b64 exec, 1')
    k('buffer_store_byte v30, v31, s[80:83], 0 offen sc1')
    k('s_mov_b64 exec, -1')
    k(f'{lab}:')
    softmax_pair(k, list(range(64, 80)) + [80, 81], 96, 128, 146, 164)
    k('v_mov_b32 v114, 0\nv_mov_b32 v115, 0')
    k('v_lshlrev_b32 v20, 4, v0')
    k('v_add_u32 v21, 4096, v20\nv_cmp_gt_u32 vcc, 86, v0\nv_cndmask_b32 v21, v27, v21, vcc')
    k(f's_mov_b32 s32, {magic(9)}')
    for rnd, dst in ((0, 22), (1, 23)):
        k(f'v_add_u32 v24, {256*rnd}, v0\nv_cmp_le_u32 vcc, 171, v24\nv_subrev_u32 v25, 171, v24\nv_cndmask_b32 v24, v24, v25, vcc')
        k('v_mov_b32 v26, 0\nv_mov_b32 v25, 1600\nv_cndmask_b32 v26, v26, v25, vcc')
        k('v_mul_hi_u32 v25, v24, s32\nv_mul_u32_u24 v28, 9, v25\nv_sub_u32 v28, v24, v28')
        k(f'v_mul_u32_u24 v25, 80, v25\nv_lshl_add_u32 v25, v28, 3, v25\nv_add3_u32 v{dst}, v25, v26, v27' if False else
          f'v_mul_u32_u24 v25, 80, v25\nv_lshl_add_u32 v25, v28, 3, v25\nv_add_u32 v25, v25, v26\nv_add_u32 v{dst}, {KVT}, v25')
    k(f'v_mov_b32 v25, {DUMMY}\nv_cmp_gt_u32 vcc, 86, v0\nv_cndmask_b32 v23, v25, v23, vcc')
    k('v_bfe_u32 v26, v1, 2, 1\nv_bfe_u32 v28, v1, 3, 2\nv_and_b32 v29, 3, v1')
    k(f'v_mul_u32_u24 v30, 1600, v19\nv_add_u32 v30, {KVT}, v30\nv_mov_b32 v31, {KVT+3200}')
    k('v_lshl_add_u32 v24, v28, 2, v29\nv_mul_u32_u24 v24, 80, v24\nv_add_u32 v24, v24, v30\nv_cmp_eq_u32 vcc, v26, v19\nv_cndmask_b32 v24, v31, v24, vcc')
    k('v_mul_u32_u24 v25, 80, v29\nv_add_u32 v25, 1280, v25\nv_add_u32 v25, v25, v30\nv_bfe_u32 v26, v1, 2, 3\nv_cmp_eq_u32 vcc, v26, v19\nv_cndmask_b32 v25, v31, v25, vcc')
    k('v_and_b32 v26, 31, v1\nv_mul_u32_u24 v26, 1152, v26\nv_mul_u32_u24 v28, 36, v19\nv_add_u32 v26, v26, v28')
    k(f's_mul_i32 s37, s33, 1152\ns_mul_i32 s32, s22, 72\ns_add_u32 s37, s37, s32\ns_add_u32 s37, s37, {WS_O}')
    k(f's_mul_i32 s39, s22, {16*5472}\ns_add_u32 s39, s39, {WS_KV}')
    stamp(k)
    lp, ld = k.label('poll'), k.label('polled')
    k(f's_cmp_lg_u32 s20, 0\ns_cbranch_scc1 {ld}')
    k('s_lshl_b32 s32, s22, 4\nv_mov_b32 v28, s32\ns_mov_b32 s36, 0')
    k(f'{lp}:')
    k('buffer_load_dwordx4 v[116:119], v28, s[80:83], 0 offen sc1')
    k('s_waitcnt vmcnt(0)')
    k('v_and_b32 v116, v116, v117\nv_and_b32 v118, v118, v119\nv_and_b32 v116, v116, v118')
    k('v_readfirstlane_b32 s32, v116')
    k(f's_cmp_eq_u32 s32, 0x01010101\ns_cbranch_scc1 {ld}')
    k(f's_add_u32 s36, s36, 1\ns_cmp_lt_u32 s36, 0x40000\ns_cbranch_scc1 {lp}')
    k(f'{ld}:')
    k('s_barrier')
    stamp(k)
    k.vm = []
    for rnd in range(2):
        for r in range(16):
            b = 128 + 64 * rnd + 4 * r
            if r == 0: k('s_mov_b32 s32, s39')
            k.vmem(f'buffer_load_dwordx4 v[{b}:{b+3}], v{20+rnd}, s[16:19], s32 offen sc1', f'r{rnd}_{r}')
            if r < 15: k('s_add_u32 s32, s32, 5472')
    for rnd in range(2):
        b = 128 + 64 * rnd
        for r in range(1, 16):
            k.wait_vm(f'r{rnd}_{r}')
            for h in (0, 2): k(f'v_pk_add_f32 v[{b+h}:{b+h+1}], v[{b+h}:{b+h+1}], v[{b+4*r+h}:{b+4*r+h+1}]')
        k(f'v_cvt_pk_bf16_f32 v{b}, v{b}, v{b+1}\nv_cvt_pk_bf16_f32 v{b+1}, v{b+2}, v{b+3}')
        k(f'ds_write_b64 v{22+rnd}, v[{b}:{b+1}]')
    k('s_waitcnt lgkmcnt(0)\ns_barrier')
    stamp(k)
    for ks in range(5):
        k.lds_op(f'ds_read_b128 v[{128+8*ks}:{131+8*ks}], v24 offset:{16*ks}', f'o{ks}')
        k.lds_op(f'ds_read_b128 v[{132+8*ks}:{135+8*ks}], v25 offset:{16*ks}', f'o{ks}')
    for ks in range(5):
        k.wait_lg(f'o{ks}')
        k(f'v_mfma_f32_32x32x16_bf16 v[32:47], v[{128+8*ks}:{131+8*ks}], v[{96+4*ks}:{99+4*ks}], {"0" if ks == 0 else "v[32:47]"}')
        k(f'v_mfma_f32_32x32x16_bf16 v[48:63], v[{132+8*ks}:{135+8*ks}], v[{96+4*ks}:{99+4*ks}], {"0" if ks == 0 else "v[48:63]"}')
    k('v_add_f32 v50, 0x358637bd, v50\nv_rcp_f32 v50, v50')
    src = list(range(32, 48)) + [48, 49]
    for r in src: k(f'v_mul_f32 v{r}, v{r}, v50')
    for i in range(9): k(f'v_cvt_pk_bf16_f32 v{64+i}, v{src[2*i]}, v{src[2*i+1]}')
    k('buffer_store_dwordx4 v[64:67], v26, s[16:19], s37 offen')
    k('buffer_store_dwordx4 v[68:71], v26, s[16:19], s37 offen offset:16')
    k('buffer_store_dword v72, v26, s[16:19], s37 offen offset:32')
    if STAMPS: stamp(k); k('s_waitcnt vmcnt(0)')
    dump_stamps(k, 16, 20, 0)
    k(f'L_{k.name}_done:')
    k('s_endpgm')
    return k

def gen_k4():
    k = Kern('red_kernel', 576, 256, 0, nvgpr=88)
    ids(k, 576)
    k('s_load_dwordx2 s[4:5], s[0:1], 56')
    k('s_load_dwordx2 s[6:7], s[0:1], 72')
    k('v_lshrrev_b32 v2, 6, v0')
    k('v_and_b32 v1, 63, v0')
    k('v_readfirstlane_b32 s20, v2')
    k('s_lshl_b32 s21, s2, 2\ns_add_u32 s21, s21, s20')
    k('v_lshlrev_b32 v2, 4, v1')
    k('s_waitcnt lgkmcnt(0)')
    srd(k, 8, 4, 5, 2359296); srd(k, 12, 6, 7, WS_END)
    k(f's_lshl_b32 s22, s21, 10\ns_add_u32 s23, s22, {WS_HF}\ns_add_u32 s22, s22, {WS_P}')
    k.vmem('buffer_load_dwordx4 v[8:11], v2, s[12:15], s23 offen', 'l0')
    for c in range(16):
        k.vmem(f'buffer_load_dwordx4 v[{12+4*c}:{15+4*c}], v2, s[12:15], s22 offen', f'l{c+1}')
        if c < 15: k('s_add_u32 s22, s22, 2359296')
    k(f's_mul_hi_u32 s24, s21, {magic(36)}')
    k('s_mul_i32 s25, s24, 36\ns_sub_u32 s25, s21, s25')
    k('s_mul_i32 s24, s24, 36864\ns_lshl_b32 s25, s25, 5\ns_add_u32 s24, s24, s25')
    k('v_and_b32 v3, 31, v1\nv_mul_u32_u24 v3, 1152, v3\nv_lshrrev_b32 v4, 5, v1\nv_lshl_add_u32 v3, v4, 4, v3')
    for c in range(17):
        k.wait_vm(f'l{c}')
        for i in range(4):
            r = 8 + 4 * c + i
            if c == 0:
                k(f'v_lshlrev_b32 v{76+2*i}, 16, v{r}'); k(f'v_and_b32 v{77+2*i}, 0xffff0000, v{r}')
            else:
                k(f'v_lshlrev_b32 v{4+(i%2)*2}, 16, v{r}'); k(f'v_and_b32 v{5+(i%2)*2}, 0xffff0000, v{r}')
                k(f'v_add_f32 v{76+2*i}, v{76+2*i}, v{4+(i%2)*2}'); k(f'v_add_f32 v{77+2*i}, v{77+2*i}, v{5+(i%2)*2}')
    for i in range(4): k(f'v_cvt_pk_bf16_f32 v{84+i}, v{76+2*i}, v{77+2*i}')
    k('v_permlane32_swap_b32 v84, v86')
    k('v_permlane32_swap_b32 v85, v87')
    k('buffer_store_dwordx4 v[84:87], v3, s[8:11], s24 offen')
    k(f'L_{k.name}_done:')
    k('s_endpgm')
    return k

HEADER = open('sequential_preLN__linear_kernel_hedgehog__dense_activation_relu__prompt.s.ref').read().split('; Override')[0]

def build(kernels):
    t = HEADER
    for k in kernels: t += k.launch_line() + '\n'
    t += '.amdgcn_target "amdgcn-amd-amdhsa--gfx950"\n'
    for k in kernels: t += k.text()
    return t

if __name__ == '__main__':
    STAMPS = 'stamps' in sys.argv
    OPT = set(sys.argv)
    for a in sys.argv:
        if a.startswith('pstore='): PSTORE = a[7:].replace('+', ' ')
    sel = [a for a in sys.argv if a.startswith('sel=')]
    sel = sel[0][4:] if sel else '1234'
    ks = [globals()[f'gen_k{c}']() for c in sel]
    open(sys.argv[1] if len(sys.argv) > 1 else 'k34.s', 'w').write(build(ks))
    for k in ks: print(k.name, 'instrs', len(k.L), 'nops inserted', k.nops_inserted)
```
